```python
import torch

def _softmax(x, axis=-1):
    return torch.softmax(x, dim=axis)
def _gelu(x):
    return torch.nn.functional.gelu(x, approximate="tanh")
def _silu(x):
    return torch.nn.functional.silu(x)
def _sigmoid(x):
    return torch.sigmoid(x)
def _layernorm(x, axis=-1, eps=1e-5):
    m = x.mean(dim=axis, keepdim=True)
    v = x.var(dim=axis, keepdim=True, unbiased=False)
    return (x - m) / torch.sqrt(v + eps)
def _scatter_add(tgt, idx, src, axis=0):
    return tgt.clone().index_add_(axis, idx, src)
def _segment_sum(src, seg, n):
    out = torch.zeros((n,) + src.shape[1:], dtype=src.dtype)
    return out.index_add_(0, seg, src)
def _pad(x, pw):
    flat = tuple(v for pair in reversed(pw) for v in pair)
    return torch.nn.functional.pad(x, flat)

kernel_name = 'standalone__kv_cache_quant_int4_int2_kv_with_per_channel_or_per_token_scales__prompt'

def setup_inputs():

    _w = (lambda a: (lambda t: t.to(torch.bfloat16) if t.is_floating_point() else t)(torch.as_tensor(a)))
    B = 1
    Sq = 2048
    Skv = 2048
    Hq = 32
    Hkv = 32
    Dh = 128
    bits = 2
    G = 64
    if G <= 0 or G >= Skv:
        G = max(1, Skv // 2)
    Skv = (Skv // G) * G
    ngk = Skv // G
    qmax = (1 << bits) - 1
    return {
        "q": _w((lambda *s: torch.randn(*s, dtype=torch.bfloat16) * 1.6)(B, Hq, Sq, Dh)),
        "qk": _w(torch.randint(0, qmax + 1, (B, Hkv, Skv, Dh)).to(torch.int32)),
        "qv": _w(torch.randint(0, qmax + 1, (B, Hkv, Skv, Dh)).to(torch.int32)),
        "k_scales": _w(torch.abs((lambda *s: torch.randn(*s, dtype=torch.bfloat16) * 1.6)(B, Hkv, ngk, Dh)) * 0.05 + 0.02),
        "k_zeros": _w((lambda *s: torch.randn(*s, dtype=torch.bfloat16) * 1.6)(B, Hkv, ngk, Dh) + float(qmax) / 2.0),
        "v_scales": _w(torch.abs((lambda *s: torch.randn(*s, dtype=torch.bfloat16) * 0.05)(B, Hkv, Skv, 1)) * 0.05 + 0.02),
        "v_zeros": _w((lambda *s: torch.randn(*s, dtype=torch.bfloat16) * 0.05)(B, Hkv, Skv, 1) + float(qmax) / 2.0),
    }

def reference(q, qk, qv, k_scales, k_zeros, v_scales, v_zeros):
    B, Hq, Sq, Dh = q.shape
    Hkv, Skv = qk.shape[1], qk.shape[2]
    ngk = k_scales.shape[2]
    G = Skv // ngk
    ks = (lambda x, n, axis: torch.repeat_interleave(x, n, dim=axis))(k_scales, G, axis=2)
    kz = (lambda x, n, axis: torch.repeat_interleave(x, n, dim=axis))(k_zeros, G, axis=2)
    k = ((lambda x, dt: x.to(dt))(qk, q.dtype) - kz) * ks
    v = ((lambda x, dt: x.to(dt))(qv, q.dtype) - v_zeros) * v_scales
    rep = Hq // Hkv
    if rep > 1:
        k = (lambda x, n, axis: torch.repeat_interleave(x, n, dim=axis))(k, rep, axis=1)
        v = (lambda x, n, axis: torch.repeat_interleave(x, n, dim=axis))(v, rep, axis=1)
    scale = float(Dh) ** -0.5
    logits = torch.einsum("bhqd,bhkd->bhqk", q, k) * scale
    p = _softmax(logits, axis=-1)
    o = torch.einsum("bhqk,bhkd->bhqd", p, v)
    return o
```

```python
import re

def R(kind, lo, n=1):
    return [f"{kind}{i}" for i in range(lo, lo + n)]

def rt(kind, lo, n=1):
    return f"{kind}{lo}" if n == 1 else f"{kind}[{lo}:{lo+n-1}]"

_opre = re.compile(r"^(-?)(\|?)([vas])(\d+)\|?$|^(-?)([vas])\[(\d+):(\d+)\]$")

def regs_of(op):
    op = op.strip()
    if op in ("vcc", "exec", "m0"):
        return [op]
    m = re.match(r"^abs\((.*)\)$", op.lstrip("-"))
    if m:
        return regs_of(m.group(1))
    m = _opre.match(op)
    if not m:
        return []
    if m.group(3):
        return [f"{m.group(3)}{m.group(4)}"]
    return R(m.group(6), int(m.group(7)), int(m.group(8)) - int(m.group(7)) + 1)

TRANS = ("v_exp_f32", "v_log_f32", "v_rcp_f32", "v_rsq_f32", "v_sqrt_f32")

class Ins:
    __slots__ = ("text", "kind", "rd", "wr", "srcc", "tags", "needs", "vm", "lg", "dpp", "cost", "perm", "wide")
    def __init__(self, text, kind, rd=(), wr=(), srcc=(), tags=(), needs=(), dpp=False, cost=1, perm=False, wide=False):
        self.text = text; self.kind = kind
        self.rd = set(rd); self.wr = set(wr); self.srcc = list(srcc)
        self.tags = set(tags); self.needs = set(needs)
        self.vm = None; self.lg = None
        self.dpp = dpp; self.cost = cost; self.perm = perm; self.wide = wide
    def __repr__(self):
        return f"<{self.render()}>"
    def render(self):
        if self.kind == "slot":
            parts = []
            if self.vm is not None: parts.append(f"vmcnt({self.vm})")
            if self.lg is not None: parts.append(f"lgkmcnt({self.lg})")
            return ("s_waitcnt " + " ".join(parts)) if parts else None
        return self.text

def split_ops(s):
    out, depth, cur = [], 0, ""
    for ch in s:
        if ch in "[(": depth += 1
        if ch in "])": depth -= 1
        if ch == "," and depth == 0:
            out.append(cur.strip()); cur = ""
        else:
            cur += ch
    if cur.strip(): out.append(cur.strip())
    return out

def I(text, tags=(), needs=(), xrd=(), xwr=()):
    text = text.strip()
    mn, _, rest = text.partition(" ")
    ops = split_ops(rest)
    mods = ""
    if ops:
        last = ops[-1]
        parts = last.split(" ", 1)
        ops[-1] = parts[0]
        mods = parts[1] if len(parts) > 1 else ""
    rd, wr = list(xrd), list(xwr)
    kw = dict(tags=tags, needs=needs)
    if mn.startswith("v_mfma"):
        wr += regs_of(ops[0]); a = regs_of(ops[1]) + regs_of(ops[2]); c = regs_of(ops[3])
        return Ins(text, "mfma", rd + a + c, wr, srcc=c, cost=2, **kw)
    if mn.startswith("ds_read"):
        wr += regs_of(ops[0]); rd += regs_of(ops[1])
        return Ins(text, "ldsr", rd, wr, **kw)
    if mn == "ds_write_addtid_b32":
        rd += regs_of(ops[0]) + ["m0"]
        return Ins(text, "ldsw", rd, wr, **kw)
    if mn.startswith("ds_write"):
        for o in ops: rd += regs_of(o)
        return Ins(text, "ldsw", rd, wr, cost=len(rd), **kw)
    if mn.startswith("ds_bpermute") or mn.startswith("ds_swizzle"):
        wr += regs_of(ops[0])
        for o in ops[1:]: rd += regs_of(o)
        return Ins(text, "ldsr", rd, wr, **kw)
    if mn.startswith(("buffer_load", "tbuffer_load")):
        if " lds" in (" " + mods):
            for o in ops: rd += regs_of(o)
            rd.append("m0")
            return Ins(text, "vml", rd, wr, **kw)
        wr += regs_of(ops[0])
        for o in ops[1:]: rd += regs_of(o)
        return Ins(text, "vml", rd, wr, **kw)
    if mn.startswith("global_load"):
        wr += regs_of(ops[0])
        for o in ops[1:]: rd += regs_of(o)
        return Ins(text, "vml", rd, wr, **kw)
    if mn.startswith(("buffer_store", "global_store", "buffer_atomic")):
        for o in ops: rd += regs_of(o)
        wide = mn.endswith(("x3", "x4"))
        return Ins(text, "vms", rd, wr, wide=wide, cost=5 if wide else 2, **kw)
    if mn.startswith("s_load") or mn in ("s_memtime", "s_memrealtime"):
        wr += regs_of(ops[0])
        for o in ops[1:]: rd += regs_of(o)
        return Ins(text, "smem", rd, wr, **kw)
    if mn == "s_barrier":
        return Ins(text, "barrier", rd, wr, **kw)
    if mn == "s_waitcnt":
        return Ins(text, "wait", rd, wr, **kw)
    if mn == "s_nop":
        return Ins(text, "nop", rd, wr, cost=int(ops[0]) + 1, **kw)
    if mn.startswith(("s_cbranch", "s_branch", "s_endpgm", "s_setprio", "s_sleep")):
        if "vcc" in mn: rd.append("vcc")
        return Ins(text, "branch", rd, wr, **kw)
    if mn.startswith("s_cmp"):
        for o in ops: rd += regs_of(o)
        return Ins(text, "salu", rd, wr, **kw)
    if mn.startswith("s_"):
        wr += regs_of(ops[0])
        for o in ops[1:]: rd += regs_of(o)
        if "saveexec" in mn: wr.append("exec")
        return Ins(text, "salu", rd, wr, **kw)
    if mn.startswith("v_"):
        wr += regs_of(ops[0])
        first = 1
        if "permlane" in mn and "swap" in mn:
            rd += regs_of(ops[0]) + regs_of(ops[1]); wr += regs_of(ops[1])
            return Ins(text, "valu", rd, wr, perm=True, cost=2, **kw)
        if mn.startswith(("v_add_co", "v_addc_co", "v_sub_co")):
            wr += regs_of(ops[1]); first = 2
        for o in ops[first:]: rd += regs_of(o)
        if mn.startswith(("v_fmac", "v_dot2c")): rd += regs_of(ops[0])
        is_dpp = "_dpp" in mn
        base = mn.replace("_e32", "").replace("_e64", "")
        if base in TRANS:
            return Ins(text, "trans", rd, wr, cost=2, **kw)
        return Ins(text, "valu", rd, wr, dpp=is_dpp, **kw)
    raise ValueError("cannot parse: " + text)

def Slot():
    return Ins(None, "slot", cost=0)

def Label(name):
    return Ins(name + ":", "label", cost=0)

def Raw(text):
    return Ins(text, "label", cost=0)

def with_slots(seq):
    out = []
    for x in seq:
        if x.kind not in ("label", "slot"):
            out.append(Slot())
        out.append(x)
    return out

def insert_waits(trace):
    q = {"vm": [], "lg": []}
    cnt = {"vm": 0, "lg": 0}
    slot = None; slot_cnt = None
    smem_out = []
    for ins in trace:
        if ins.kind == "slot":
            slot = ins; slot_cnt = dict(cnt)
            continue
        if ins.kind == "label":
            continue
        if ins.kind == "wait":
            m = re.search(r"vmcnt\((\d+)\)", ins.text)
            if m: q["vm"] = [e for e in q["vm"] if e[1] >= cnt["vm"] - int(m.group(1))]
            m = re.search(r"lgkmcnt\((\d+)\)", ins.text)
            if m:
                q["lg"] = [e for e in q["lg"] if e[1] >= cnt["lg"] - int(m.group(1))]
                if int(m.group(1)) == 0: smem_out = []
            continue
        touched = ins.rd | ins.wr
        for e in smem_out:
            if e.wr & touched:
                raise RuntimeError(f"SMEM result used without lgkmcnt(0): {ins}")
        for c, mx in (("vm", 63), ("lg", 15)):
            need = None
            for (p, idx) in q[c]:
                if (p.wr & touched) or (p.tags & ins.needs):
                    need = idx
            if need is not None:
                if need >= slot_cnt[c]:
                    raise RuntimeError(f"producer issued after the wait slot of {ins}")
                if c == "lg" and smem_out:
                    n = 0
                else:
                    n = min(slot_cnt[c] - need - 1, mx)
                cur = getattr(slot, c)
                setattr(slot, c, n if cur is None else min(cur, n))
                q[c] = [e for e in q[c] if e[1] > need]
        if ins.kind in ("vml", "vms"):
            q["vm"].append((ins, cnt["vm"])); cnt["vm"] += 1
        elif ins.kind in ("ldsr", "ldsw"):
            q["lg"].append((ins, cnt["lg"])); cnt["lg"] += 1
        elif ins.kind == "smem":
            smem_out.append(ins)

def _is_valu(x): return x.kind in ("valu", "trans")

def required_gap(p, c):
    n = 0
    vw = {r for r in p.wr if r[0] in "va" and r != "vcc"}
    sw = p.wr - vw
    if _is_valu(p):
        if c.kind == "mfma" and vw & c.rd: n = max(n, 2)
        if c.kind == "mfma" and "exec" in p.wr: n = max(n, 4)
        if p.kind == "trans" and c.kind == "valu" and vw & c.rd: n = max(n, 1)
        if c.dpp and vw & c.rd: n = max(n, 2)
        if c.perm and vw & c.rd: n = max(n, 2)
        if c.kind == "valu" and c.text.startswith(("v_readfirstlane", "v_readlane")) and vw & c.rd: n = max(n, 1)
        if c.kind in ("vml", "vms") and sw & c.rd: n = max(n, 5)
        if _is_valu(c) and sw & c.rd: n = max(n, 2)
        if c.kind in ("salu", "branch") and sw & c.rd: n = max(n, 1)
    if p.kind == "mfma":
        passes = 8 if "32x32" in p.text else 4
        big = {4: 8, 8: 12}[passes]
        if _is_valu(c) and p.wr & (c.rd | c.wr): n = max(n, big)
        if c.kind in ("vml", "vms", "ldsr", "ldsw") and p.wr & (c.rd | c.wr): n = max(n, big)
        if c.kind == "mfma":
            ab = c.rd - set(c.srcc)
            if p.wr & ab: n = max(n, big)
            if p.wr & set(c.srcc) and p.wr != set(c.srcc): n = max(n, big - 2)
            if (p.wr & c.wr) and not (p.wr & set(c.srcc)): n = max(n, big)
        if _is_valu(c) and set(p.srcc) & c.wr: n = max(n, {4: 3, 8: 7}[passes])
    if p.kind == "salu" and "m0" in p.wr and "m0" in c.rd and c.kind in ("ldsw", "vml"): n = max(n, 1)
    if p.kind == "vms" and p.wide:
        data = {r for r in p.rd if r[0] in "va"}
        if data & c.wr: n = max(n, 2)
    return n

def states(x):
    if x.kind == "label": return 0
    if x.kind == "slot": return 1 if x.render() else 0
    if x.kind == "nop": return x.cost
    return 1

def check_hazards(trace, window=24):
    bad = []
    real = [(i, x) for i, x in enumerate(trace) if states(x) > 0]
    for k, (i, c) in enumerate(real):
        if c.kind in ("slot", "nop", "wait"): continue
        dist = 0
        for j in range(k - 1, max(-1, k - window), -1):
            p = real[j][1]
            need = required_gap(p, c)
            if need > dist:
                bad.append((i, need - dist, p, c))
            dist += states(p)
            if dist >= 20: break
    return bad

def pad_hazards(seq, before=()):
    seq = list(seq)
    before = list(before)
    while True:
        bad = [b for b in check_hazards(before + seq) if b[0] >= len(before)]
        if not bad: return seq
        i = min(b[0] for b in bad)
        miss = max(b[1] for b in bad if b[0] == i)
        seq.insert(i - len(before), I(f"s_nop {miss-1}"))

def render(seq):
    out = []
    for x in seq:
        t = x.render()
        if t is None: continue
        out.append(t if x.kind == "label" else "    " + t)
    return "\n".join(out) + "\n"
```

```python
import sys, struct, math
from asmlib import *

NAME = "standalone__kv_cache_quant_int4_int2_kv_with_per_channel_or_per_token_scales__prompt_kernel"

def f2u(x): return struct.unpack("<I", struct.pack("<f", x))[0]
def hx(x): return "0x%08x" % x

class Cfg:
    stamp = False
    force_slow = False
    prefetch_code = True
    ld_mod = ""
    st_mod = ""
    q_mod = ""

CSCALE = (128.0 ** -0.5) * math.log2(math.e)
BETA = 90.0

KBUF = [0, 16448]
VBUF = [32896, 49536]
KTAB = 66176
BIAS = 98944
AUX = 107136
ZERO = 123520
QST = 124608
LDS_BYTES = 157376
QBASE = [QST, QST + 16384, KBUF[1], VBUF[1]]

SQ, SK, SV, SO, SKS, SKZ, SVS, SVZ = 20, 24, 28, 32, 36, 40, 44, 48
sKa, sKb, sVo, sCnt, sSelLo, sSelHi, sW = 52, 53, 54, 55, 56, 57, 58
sHead, sQb, sT0, sT1, sT2, sQbase = 59, 60, 61, 62, 63, 64
s4k, s8k, s12k = 65, 66, 67
sBad = 68
sC0, sC1, sC2 = 70, 71, 72
sSt = 76
def srd(b): return f"s[{b}:{b+3}]"

vKld, vVld, vKrd, vVrd, vVwr, vBias, vAux, vAuxInc, vKtab, vOst, vLane = 1, 2, 3, 4, 5, 6, 7, 8, 9, 10, 11
BI = 12
KA, KB = 20, 24
KST, VST = 28, 44
VP = 60
KF = 76
KP = 84
PB = 88
SB = 128
TMP = 192
def aO(qb, i): return 32 * qb + 4 * i
def aX(qb): return 128 + 4 * qb
def aQ(qb, ds): return 144 + 16 * qb + 4 * ds
def aF(f): return 208 + 4 * (f % 8)
aAUX = 240

def vS(par, t, qb): return SB + 32 * par + 8 * qb + 4 * t
def vPb(par, qb): return PB + 16 * par + 4 * qb

TFMT = "format:[BUF_DATA_FORMAT_32_32_32_32,BUF_NUM_FORMAT_UINT]"
def off(n): return f" offset:{n}" if n else ""

def k_load(cfg, n, dst, sa=sKa, sb=sKb):
    so = sa if n < 4 else sb
    return I(f"tbuffer_load_format_d16_xyzw v[{dst+2*n}:{dst+2*n+1}], v{vKld}, {srd(SK)}, s{so} {TFMT} offen{off((n&3)*1024)}{cfg.ld_mod}")
def v_load(cfg, n, dst, so=f"s{sVo}", vaddr=vVld):
    return I(f"tbuffer_load_format_d16_xyzw v[{dst+2*n}:{dst+2*n+1}], v{vaddr}, {srd(SV)}, {so} {TFMT} offen{off(n*512)}{cfg.ld_mod}")

def k_mix(n, x, src):
    d = KF + 4 * (n & 1) + x
    s = src + 2 * n + (x >> 1)
    sel = " op_sel:[1,0,0]" if x & 1 else ""
    return I(f"v_fma_mix_f32 v{d}, v{s}, v{KA+x}, v{KB+x}{sel} op_sel_hi:[1,0,0]")
def k_cvt(n, e):
    s = KF + 4 * (n & 1) + 2 * e
    return I(f"v_cvt_pk_bf16_f32 v{KP+2*(n&1)+e}, v{s}, v{s+1}")
def k_write(n, e, par):
    o = KBUF[par] + (2 * (n >> 2) + (n & 1)) * 4112 + ((n >> 1) & 1) * 512 + e * 256
    return I(f"ds_write_addtid_b32 v{KP+2*(n&1)+e}{off(o)}", tags=["kv"])
def v_perm(jj, dd, src):
    e = dd >> 1
    sel = sSelHi if dd & 1 else sSelLo
    return I(f"v_perm_b32 v{VP+4*dd+jj}, v{src+2*(2*jj+1)+e}, v{src+2*(2*jj)+e}, s{sel}")
def v_write(dd, par):
    return I(f"ds_write_b128 v{vVwr}, v[{VP+4*dd}:{VP+4*dd+3}]{off(par*16640 + dd*1040)}", tags=["kv"])
def k_read(par, s, f):
    ds, t = f >> 1, f & 1
    o = KBUF[par] + s * 1024 + t * 512 + (ds & 1) * 256 + (ds >> 1) * 16
    return I(f"ds_read_b128 a[{aF(f)}:{aF(f)+3}], v{vKrd}{off(o)}", tags=["kv"])
def v_read(par, s, i):
    return I(f"ds_read_b128 a[{aF(i)}:{aF(i)+3}], v{vVrd}{off(par*16640 + (s*8+i)*1040)}", tags=["kv"])
def aux_read(rel):
    return I(f"ds_read_b128 a[{aAUX}:{aAUX+3}], v{vAux}{off(rel*256)}")
def bias_read(rel, t):
    return I(f"ds_read_b128 v[{BI+4*t}:{BI+4*t+3}], v{vBias}{off(rel*128 + t*16)}")
def ktab_read(rel, which):
    d = KB if which else KA
    return I(f"ds_read_b128 v[{d}:{d+3}], v{vKtab}{off(rel*1024 + which*512)}")

def qk_mfma(spar, k):
    f, j = k >> 2, k & 3
    ds, t = f >> 1, f & 1
    qb = j if t == 0 else 3 - j
    d = vS(spar, t, qb)
    c = f"v[{BI+4*t}:{BI+4*t+3}]" if ds == 0 else f"v[{d}:{d+3}]"
    return I(f"v_mfma_f32_16x16x32_bf16 v[{d}:{d+3}], a[{aF(f)}:{aF(f)+3}], a[{aQ(qb,ds)}:{aQ(qb,ds)+3}], {c}")
def pv_one(ppar, i, qb, first):
    p = vPb(ppar, qb)
    d, b = (aO(qb, i), aF(i)) if i < 8 else (aX(qb), aAUX)
    c = "0" if first else f"a[{d}:{d+3}]"
    return I(f"v_mfma_f32_16x16x32_bf16 a[{d}:{d+3}], v[{p}:{p+3}], a[{b}:{b+3}], {c}")
def pv_mfma(ppar, k, first=False):
    i, j = k >> 2, k & 3
    qb = 3 - j if i % 2 == 0 else j
    return pv_one(ppar, i, qb, first)
def sm_exp(par, k):
    qb, x = 3 - (k >> 3), k & 7
    r = vS(par, 0, qb) + x
    return I(f"v_exp_f32 v{r}, v{r}")
def sm_cvt(par, k):
    qb, x = 3 - (k >> 2), k & 3
    r = vS(par, 0, qb) + 2 * x
    return I(f"v_cvt_pk_bf16_f32 v{vPb(par,qb)+x}, v{r}, v{r+1}")

class Gap:
    def __init__(self):
        self.mfma = None; self.salu = []; self.mem = []; self.valu = []

def body(cfg, par, kind, branch=None):
    first = kind == "first"
    G = [Gap() for _ in range(136)]
    for p in range(136):
        idx = (p + 123) % 136
        if idx < 32: G[p].mfma = qk_mfma(0, idx)
        elif idx < 68: G[p].mfma = None if first else pv_mfma(1, idx - 32)
        elif idx < 100: G[p].mfma = qk_mfma(1, idx - 68)
        else:
            if first and p < 13: G[p].mfma = None
            else: G[p].mfma = pv_mfma(0, idx - 100)
    for p in range(136):
        idx = (p + 123) % 136
        if 32 <= idx < 100: o, sp = idx - 32, 0
        else: o, sp = (idx - 100) % 136, 1
        if first and p < 45: continue
        if o % 2 == 0 and o <= 62: G[p].valu.append(sm_exp(sp, o // 2))
        if o % 4 == 3 and o <= 63: G[p].valu.append(sm_cvt(sp, o // 4))
    for f in range(34):
        p = 4 * f
        if f < 8: G[p].mem.append(k_read(par, 0, f))
        elif f < 16:
            if not first: G[p].mem.append(v_read(par, 0, f - 8))
        elif f == 16:
            if not first: G[p].mem.append(aux_read(2 * par))
        elif f < 25: G[p].mem.append(k_read(par, 1, f - 17))
        elif f < 33: G[p].mem.append(v_read(par, 1, f - 25))
        else: G[p].mem.append(aux_read(2 * par + 1))
    G[44].mem.append(bias_read(2 * par + 1, 0))
    G[48].mem.append(bias_read(2 * par + 1, 1))
    G[112].mem.append(bias_read(2 * par + 2, 0))
    G[130].mem.append(bias_read(2 * par + 2, 1))
    wp = par ^ 1
    G[2].mem.append(ktab_read(par + 1, 0))
    G[6].mem.append(ktab_read(par + 1, 1))
    for u in range(8):
        jj, h = u >> 1, u & 1
        G[2 + 4 * u].valu += [v_perm(jj, 2 * h, VST), v_perm(jj, 2 * h + 1, VST)]
    for n in range(8):
        G[10 + 4 * n].mem.append(v_load(cfg, n, VST))
    for dd, p in enumerate((41, 43, 109, 111)):
        G[p].mem.append(v_write(dd, wp))
    for n in range(8):
        p = 34 + 12 * n
        G[p].valu += [k_mix(n, 0, KST), k_mix(n, 1, KST)]
        G[p + 4].valu += [k_mix(n, 2, KST), k_mix(n, 3, KST)]
        G[p + 8].valu += [k_cvt(n, 0), k_cvt(n, 1)]
        G[p + 8].mem.append(k_load(cfg, n, KST))
        if n < 7:
            G[p + 12].mem.append(k_write(n, 0, wp))
            G[p + 16].mem.append(k_write(n, 1, wp))
        else:
            G[127].mem += [k_write(n, 0, wp), k_write(n, 1, wp)]
    G[41].salu.append(I(f"s_add_u32 s{sVo}, s{sVo}, 0x8000"))
    G[83].salu.append(I(f"s_add_u32 s{sKa}, s{sKa}, 0x8000"))
    G[129].salu.append(I(f"s_add_u32 s{sKb}, s{sKb}, 0x8000"))
    if par == 1:
        G[130].valu.append(I(f"v_add_u32 v{vKtab}, 2048, v{vKtab}"))
        G[134].valu.append(I(f"v_add_u32 v{vBias}, 512, v{vBias}"))
        G[134].valu.append(I(f"v_add_u32 v{vAux}, v{vAuxInc}, v{vAux}"))
        G[131].salu.append(I(f"s_sub_u32 s{sCnt}, s{sCnt}, 1"))
    seq = []
    for p, g in enumerate(G):
        if g.mfma is not None:
            seq.append(g.mfma)
        if p == 134:
            seq.append(I("s_barrier", needs=["kv"]))
        elif p == 135 and branch is not None:
            seq.append(branch)
        else:
            seq.append(Slot())
        seq += g.salu + g.mem + g.valu
    return seq, G

def gap_report(G):
    tot = 0; under = []
    for p, g in enumerate(G):
        c = sum(x.cost for x in g.mem + g.valu)
        if g.mfma is not None:
            if c < 2: under.append((p, c))
            tot += 2 + max(c, 2)
        else:
            tot += c
    return tot, under

def stamp(cfg, k):
    if not cfg.stamp: return []
    return [I(f"s_memrealtime s[{sSt+2*k}:{sSt+2*k+1}]"), I("s_waitcnt lgkmcnt(0)")]

def prologue(cfg):
    s = []
    a = s.append
    a(I("s_cmp_ge_u32 s2, 256"))
    a(I("s_cbranch_scc1 L_end"))
    a(I("s_load_dwordx16 s[4:19], s[0:1], 0"))
    if cfg.stamp:
        a(I("s_load_dwordx2 s[92:93], s[0:1], 72"))
        a(I(f"s_memrealtime s[{sSt}:{sSt+1}]"))
        a(I(f"s_memtime s[{sSt+12}:{sSt+13}]"))
    a(I(f"v_lshrrev_b32 v{TMP}, 6, v0"))
    a(I(f"v_and_b32 v{vLane}, 63, v0"))
    a(I(f"v_readfirstlane_b32 s{sW}, v{TMP}"))
    if cfg.prefetch_code:
        a(I("s_getpc_b64 s[74:75]"))
        a(Label("L_pc"))
        a(I(f"v_lshlrev_b32 v{TMP+1}, 7, v0"))
        a(I(f"v_min_u32 v{TMP+1}, L_slow-L_pc, v{TMP+1}"))
        a(I(f"global_load_dword v{TMP+63}, v{TMP+1}, s[74:75]"))
    a(I(f"s_and_b32 s{sT0}, s2, 7"))
    a(I(f"s_lshr_b32 s{sT1}, s2, 3"))
    a(I(f"s_and_b32 s{sT2}, s{sT1}, 3"))
    a(I(f"s_lshl_b32 s{sT0}, s{sT0}, 2"))
    a(I(f"s_add_u32 s{sHead}, s{sT0}, s{sT2}"))
    a(I(f"s_lshr_b32 s{sQb}, s{sT1}, 2"))
    a(I(f"s_movk_i32 s{s4k}, 0x1000"))
    a(I(f"s_movk_i32 s{s8k}, 0x2000"))
    a(I(f"s_movk_i32 s{s12k}, 0x3000"))
    vT = TMP + 2
    a(I(f"v_lshlrev_b32 v{vT}, 4, v0"))
    a(I(f"s_lshl_b32 s{sT0}, s{sW}, 13"))
    a(I(f"v_lshl_add_u32 v{vKld}, v{vLane}, 4, s{sT0}"))
    a(I(f"v_and_b32 v{vT+1}, 31, v0"))
    a(I(f"v_bfe_u32 v{vT+2}, v0, 5, 1"))
    a(I(f"v_lshlrev_b32 v{vT+3}, 12, v{vT+2}"))
    a(I(f"v_lshl_add_u32 v{vT+3}, v{vT+1}, 4, v{vT+3}"))
    a(I(f"v_add_u32 v{vVld}, s{sT0}, v{vT+3}"))
    a(I(f"s_and_b32 s{sT1}, s{sT0}, 0x2000"))
    a(I(f"v_add_u32 v{vT+3}, s{sT1}, v{vT+3}"))
    a(I(f"s_waitcnt lgkmcnt(0)"))
    def mk(b, p, sh, size, extra=None):
        a(I(f"s_lshl_b32 s{sT0}, s{sHead}, {sh}"))
        if extra:
            a(I(f"s_lshl_b32 s{sT1}, s{sQb}, 16"))
            a(I(f"s_add_u32 s{sT0}, s{sT0}, s{sT1}"))
        a(I(f"s_add_u32 s{b}, s{p}, s{sT0}"))
        a(I(f"s_addc_u32 s{b+1}, s{p+1}, 0"))
        a(I(f"s_mov_b32 s{b+2}, {size}"))
        a(I(f"s_mov_b32 s{b+3}, 0x20000"))
    RKS, RKZ, RVS, RVZ = SB, SB + 8, SB + 16, SB + 20
    mk(SKS, 10, 13, 8192)
    a(I(f"buffer_load_dwordx4 v[{RKS}:{RKS+3}], v{vT}, {srd(SKS)}, 0 offen"))
    a(I(f"buffer_load_dwordx4 v[{RKS+4}:{RKS+7}], v{vT}, {srd(SKS)}, s{s4k} offen"))
    mk(SKZ, 12, 13, 8192)
    a(I(f"buffer_load_dwordx4 v[{RKZ}:{RKZ+3}], v{vT}, {srd(SKZ)}, 0 offen"))
    a(I(f"buffer_load_dwordx4 v[{RKZ+4}:{RKZ+7}], v{vT}, {srd(SKZ)}, s{s4k} offen"))
    mk(SVS, 14, 12, 4096)
    a(I(f"buffer_load_dwordx4 v[{RVS}:{RVS+3}], v{vT}, {srd(SVS)}, 0 offen"))
    mk(SVZ, 16, 12, 4096)
    a(I(f"buffer_load_dwordx4 v[{RVZ}:{RVZ+3}], v{vT}, {srd(SVZ)}, 0 offen"))
    K0, V0 = TMP + 16, TMP + 32
    mk(SK, 6, 20, 1 << 20)
    a(I(f"s_mov_b32 s{sKa}, 0"))
    a(I(f"s_movk_i32 s{sKb}, 0x1000"))
    for n in range(8): a(k_load(cfg, n, K0))
    mk(SQ, 4, 19, 65536, extra=True)
    a(I(f"v_lshrrev_b32 v{vT+4}, 4, v{vLane}"))
    a(I(f"v_and_b32 v{vT+5}, 15, v0"))
    a(I(f"v_xor_b32 v{vT+6}, v{vT+5}, v{vT+4}"))
    a(I(f"v_lshlrev_b32 v{vT+6}, 4, v{vT+6}"))
    a(I(f"v_lshl_add_u32 v{vT+6}, v{vT+4}, 8, v{vT+6}"))
    a(I(f"s_lshl_b32 s{sT0}, s{sW}, 14"))
    a(I(f"v_add_u32 v{vT+6}, s{sT0}, v{vT+6}"))
    a(I(f"v_xor_b32 v{vT+7}, 64, v{vT+6}"))
    a(I(f"s_add_u32 s{sQbase}, s{sT0}, {QST}"))
    a(I(f"s_cmp_eq_u32 s{sW}, 2"))
    a(I(f"s_cselect_b32 s{sQbase}, {QBASE[2]}, s{sQbase}"))
    a(I(f"s_cmp_eq_u32 s{sW}, 3"))
    a(I(f"s_cselect_b32 s{sQbase}, {QBASE[3]}, s{sQbase}"))
    for qb in range(4):
        a(I(f"s_add_u32 m0, s{sQbase}, {qb*4096}"))
        so = ["0", f"s{s4k}", f"s{s8k}", f"s{s12k}"][qb]
        for b in range(4):
            a(I(f"buffer_load_dwordx4 v{vT+6+(b&1)}, {srd(SQ)}, {so} offen{off(b*1024)}{cfg.q_mod} lds", tags=[f"q{qb}"]))
    mk(SV, 8, 20, 1 << 20)
    for n in range(8): a(v_load(cfg, n, V0, so="0", vaddr=vT + 3))
    a(I(f"s_mov_b32 s{sKa}, 0x8000"))
    a(I(f"s_mov_b32 s{sKb}, 0x9000"))
    a(I(f"s_movk_i32 s{sVo}, 0x4000"))
    for n in range(8): a(v_load(cfg, n, VST))
    for n in range(8): a(k_load(cfg, n, KST))
    a(I(f"s_mov_b32 s{sKa}, 0x10000"))
    a(I(f"s_mov_b32 s{sKb}, 0x11000"))
    a(I(f"s_mov_b32 s{sVo}, 0xc000"))
    mk(SO, 18, 19, 65536, extra=True)
    a(I(f"s_mov_b32 s{sSelLo}, 0x05040100"))
    a(I(f"s_mov_b32 s{sSelHi}, 0x07060302"))
    a(I(f"s_mov_b32 s{sCnt}, 15"))
    a(I(f"s_and_b32 s{sT0}, s{sW}, 1"))
    a(I(f"s_lshr_b32 s{sT1}, s{sW}, 1"))
    a(I(f"s_lshl_b32 s{sT2}, s{sT0}, 11"))
    a(I(f"s_lshl_b32 s{sC0}, s{sT1}, 10"))
    a(I(f"s_add_u32 m0, s{sT2}, s{sC0}"))
    a(I(f"s_mul_i32 s{sT1}, s{sT1}, 8320"))
    a(I(f"s_lshl_b32 s{sT0}, s{sT0}, 9"))
    a(I(f"s_add_u32 s{sT0}, s{sT0}, s{sT1}"))
    a(I(f"s_add_u32 s{sT0}, s{sT0}, {VBUF[0]}"))
    a(I(f"v_and_b32 v{vT+8}, 1, v0"))
    a(I(f"v_mul_u32_u24 v{vT+9}, 4160, v{vT+8}"))
    a(I(f"v_lshl_add_u32 v{vT+9}, v{vT+2}, 8, v{vT+9}"))
    a(I(f"v_lshrrev_b32 v{vT+10}, 1, v{vT+1}"))
    a(I(f"v_lshl_add_u32 v{vT+9}, v{vT+10}, 4, v{vT+9}"))
    a(I(f"v_add_u32 v{vVwr}, s{sT0}, v{vT+9}"))
    a(I(f"v_lshlrev_b32 v{vVrd}, 4, v{vLane}"))
    a(I(f"v_add_u32 v{vVrd}, {VBUF[0]}, v{vVrd}"))
    a(I(f"v_bfe_u32 v{vT+9}, v0, 1, 2"))
    a(I(f"v_mul_u32_u24 v{vKrd}, 4112, v{vT+9}"))
    a(I(f"v_bfe_u32 v{vT+9}, v0, 3, 1"))
    a(I(f"v_lshl_add_u32 v{vKrd}, v{vT+9}, 11, v{vKrd}"))
    a(I(f"v_lshl_add_u32 v{vKrd}, v{vT+8}, 7, v{vKrd}"))
    a(I(f"v_bfe_u32 v{vT+9}, v0, 4, 1"))
    a(I(f"v_lshl_add_u32 v{vKrd}, v{vT+9}, 6, v{vKrd}"))
    a(I(f"v_lshl_add_u32 v{vKrd}, v{vT+2}, 5, v{vKrd}"))
    a(I(f"v_lshlrev_b32 v{vT+9}, 3, v{vT+9}"))
    a(I(f"v_lshl_add_u32 v{vT+9}, v{vT+2}, 2, v{vT+9}"))
    a(I(f"v_and_b32 v{vT+10}, 7, v0"))
    a(I(f"v_xor_b32 v{vT+9}, v{vT+9}, v{vT+10}"))
    a(I(f"v_lshlrev_b32 v{vT+9}, 4, v{vT+9}"))
    a(I(f"v_lshl_add_u32 v{vT+9}, v{vT+5}, 8, v{vT+9}"))
    vQr = TMP + 48
    a(I(f"v_add_u32 v{vQr}, s{sQbase}, v{vT+9}"))
    for x in range(1, 4): a(I(f"v_xor_b32 v{vQr+x}, {16*x}, v{vQr}"))
    a(I(f"v_lshlrev_b32 v{vBias}, 5, v{vT+4}"))
    a(I(f"v_add_u32 v{vBias}, {BIAS}, v{vBias}"))
    a(I(f"v_lshlrev_b32 v{vKtab}, 4, v{vT+1}"))
    a(I(f"v_add_u32 v{vKtab}, {KTAB}, v{vKtab}"))
    a(I(f"v_lshlrev_b32 v{vT+9}, 6, v{vT+5}"))
    a(I(f"v_add_u32 v{vT+9}, {AUX-256}, v{vT+9}"))
    a(I(f"v_mov_b32 v{vT+10}, {ZERO}"))
    a(I(f"v_cmp_gt_u32 vcc, 4, v{vT+5}"))
    a(I(f"v_mov_b32 v{vAuxInc}, 0x400"))
    a(I(f"v_cndmask_b32 v{vAux}, v{vT+10}, v{vT+9}, vcc"))
    a(I(f"v_cndmask_b32 v{vAuxInc}, 0, v{vAuxInc}, vcc"))
    a(I(f"v_lshl_add_u32 v{vAux}, v{vT+4}, 4, v{vAux}"))
    a(I(f"s_lshl_b32 s{sT0}, s{sW}, 14"))
    a(I(f"v_lshlrev_b32 v{vOst}, 10, v{vT+4}"))
    a(I(f"v_lshl_add_u32 v{vOst}, v{vT+5}, 4, v{vOst}"))
    a(I(f"v_add_u32 v{vOst}, s{sT0}, v{vOst}"))
    vKw, vBw, vAw, vZw = vT + 9, vT + 10, vT + 11, vT + 12
    a(I(f"v_lshrrev_b32 v{vKw}, 4, v0"))
    a(I(f"v_lshlrev_b32 v{vKw}, 10, v{vKw}"))
    a(I(f"v_lshl_add_u32 v{vKw}, v{vT+5}, 5, v{vKw}"))
    a(I(f"v_add_u32 v{vKw}, {KTAB}, v{vKw}"))
    a(I(f"v_lshlrev_b32 v{vBw}, 5, v0"))
    a(I(f"v_add_u32 v{vBw}, {BIAS}, v{vBw}"))
    a(I(f"v_lshrrev_b32 v{vAw}, 2, v0"))
    a(I(f"v_lshlrev_b32 v{vAw}, 8, v{vAw}"))
    a(I(f"v_and_b32 v{vZw}, 3, v0"))
    a(I(f"v_lshl_add_u32 v{vAw}, v{vZw}, 4, v{vAw}"))
    a(I(f"v_add_u32 v{vAw}, {AUX}, v{vAw}"))
    a(I(f"v_lshlrev_b32 v{vZw}, 4, v{vLane}"))
    a(I(f"v_add_u32 v{vZw}, {ZERO}, v{vZw}"))
    W = SB + 24
    for x in range(4): a(I(f"v_mov_b32 v{W+x}, 0"))
    for x in range(4): a(I(f"v_mov_b32 v{W+4+x}, 0x3f803f80"))
    a(I(f"ds_write_b128 v{vZw}, v[{W}:{W+3}]", tags=["tab"]))
    a(I(f"ds_write_b128 v{vAw}, v[{W+4}:{W+7}] offset:192", tags=["tab"]))
    a(I(f"s_mov_b32 s{sC0}, {hx(f2u(CSCALE))}"))
    a(I(f"s_mov_b32 s{sC1}, {hx(f2u(2.0**24))}"))
    a(I(f"s_mov_b32 s{sC2}, 0xffff0000"))
    s += stamp(cfg, 1)
    def unpack(dst, src, j):
        if j & 1: a(I(f"v_and_b32 v{dst}, s{sC2}, v{src+(j>>1)}"))
        else: a(I(f"v_lshlrev_b32 v{dst}, 16, v{src+(j>>1)}"))
    for h in range(2):
        A, B = W + 8 + 16 * h, W + 16 + 16 * h
        for j in range(8): unpack(A + j, RKS + 4 * h, j)
        for j in range(8): unpack(B + j, RKZ + 4 * h, j)
        for j in range(8): a(I(f"v_mul_f32 v{A+j}, s{sC0}, v{A+j}"))
        for j in range(8): a(I(f"v_mul_f32 v{B+j}, -v{B+j}, v{A+j}"))
        for j in range(8): a(I(f"v_mul_f32 v{A+j}, s{sC1}, v{A+j}"))
        for x in range(2):
            a(I(f"ds_write_b128 v{vKw}, v[{A+4*x}:{A+4*x+3}]{off(h*16384 + 16*x)}", tags=["tab"]))
            a(I(f"ds_write_b128 v{vKw}, v[{B+4*x}:{B+4*x+3}]{off(h*16384 + 512 + 16*x)}", tags=["tab"]))
    X, L, Rr = SB, SB + 8, W
    a(I(f"ds_write_b128 v{vAw}, v[{RVZ}:{RVZ+3}]", tags=["tab"]))
    for j in range(8): unpack(X + j, RVS, j)
    for j in range(8): a(I(f"v_log_f32 v{L+j}, v{X+j}"))
    for j in range(8): a(I(f"v_rcp_f32 v{Rr+j}, v{X+j}"))
    mn, mx = W + 8, W + 9
    a(I(f"v_min3_f32 v{mn}, v{L}, v{L+1}, v{L+2}"))
    a(I(f"v_max3_f32 v{mx}, v{L}, v{L+1}, v{L+2}"))
    for j in (3, 5):
        a(I(f"v_min3_f32 v{mn}, v{mn}, v{L+j}, v{L+j+1}"))
        a(I(f"v_max3_f32 v{mx}, v{mx}, v{L+j}, v{L+j+1}"))
    a(I(f"v_min_f32 v{mn}, v{mn}, v{L+7}"))
    a(I(f"v_max_f32 v{mx}, v{mx}, v{L+7}"))
    a(I(f"v_mov_b32 v{W+10}, 0x7fc00000"))
    a(I(f"v_cmp_le_f32 vcc, {hx(f2u(-40.0))}, v{mn}"))
    for j in range(8): a(I(f"v_mul_f32 v{Rr+j}, {hx(f2u(2.0**-40))}, v{Rr+j}"))
    a(I(f"v_cndmask_b32 v{L}, v{W+10}, v{L}, vcc"))
    a(I(f"v_cmp_ge_f32 vcc, {hx(f2u(20.0))}, v{mx}"))
    H = W + 12
    for j in range(4): a(I(f"v_cvt_pk_bf16_f32 v{H+j}, v{Rr+2*j}, v{Rr+2*j+1}"))
    a(I(f"v_cndmask_b32 v{L}, v{W+10}, v{L}, vcc"))
    for j in range(8): a(I(f"v_add_f32 v{L+j}, {hx(f2u(BETA))}, v{L+j}"))
    for j in range(8): unpack(X + j, H, j)
    for j in range(8): a(I(f"v_sub_f32 v{Rr+j}, v{Rr+j}, v{X+j}"))
    for j in range(4): a(I(f"v_cvt_pk_bf16_f32 v{H+4+j}, v{Rr+2*j}, v{Rr+2*j+1}"))
    a(I(f"ds_write_b128 v{vBw}, v[{L}:{L+3}]", tags=["tab"]))
    a(I(f"ds_write_b128 v{vBw}, v[{L+4}:{L+7}] offset:16", tags=["tab"]))
    a(I(f"ds_write_b128 v{vAw}, v[{H}:{H+3}] offset:64", tags=["tab"]))
    a(I(f"ds_write_b128 v{vAw}, v[{H+4}:{H+7}] offset:128", tags=["tab"]))
    a(I("s_barrier", needs=["tab"]))
    a(ktab_read(0, 0)); a(ktab_read(0, 1))
    a(bias_read(0, 0)); a(bias_read(0, 1))
    for n in range(8):
        for x in range(4): a(k_mix(n, x, K0))
        a(k_cvt(n, 0)); a(k_cvt(n, 1))
        a(k_write(n, 0, 0)); a(k_write(n, 1, 0))
    s += stamp(cfg, 2)
    for qb in range(4):
        for x in range(4):
            r = SB + 16 * qb + 4 * x
            a(I(f"ds_read_b128 v[{r}:{r+3}], v{vQr+x}{off(qb*4096)}", needs=[f"q{qb}"], tags=["kv"]))
        if qb > 0:
            for x in range(16):
                D, h, y = x >> 3, (x >> 2) & 1, x & 3
                a(I(f"v_accvgpr_write_b32 a{aQ(qb-1, 2*D+(y&1)) + 2*h + (y>>1)}, v{SB+16*(qb-1)+x}"))
    for jj in range(4):
        for dd in range(4): a(v_perm(jj, dd, V0))
    for dd in range(4): a(v_write(dd, 0))
    for x in range(16):
        D, h, y = x >> 3, (x >> 2) & 1, x & 3
        a(I(f"v_accvgpr_write_b32 a{aQ(3, 2*D+(y&1)) + 2*h + (y>>1)}, v{SB+48+x}"))
    for x in range(144): a(I(f"v_accvgpr_write_b32 a{x}, 0"))
    a(I("s_barrier", needs=["kv"]))
    s += stamp(cfg, 3)
    return with_slots(s)

def tail(cfg):
    G = [Gap() for _ in range(13 + 36)]
    for p in range(13):
        G[p].mfma = pv_mfma(0, 23 + p)
    order = [(qb, i) for qb in (3, 2, 1, 0) for i in range(9)]
    for k, (qb, i) in enumerate(order):
        G[13 + k].mfma = pv_one(1, i, qb, False)
    ex = list(range(12, 32)); cv = list(range(5, 16))
    pos = [1, 3, 5, 7, 9, 11] + list(range(13, 27))
    done = {}
    for k, p in zip(ex, pos):
        G[p].valu.append(sm_exp(1, k)); done[k] = p
    for k in cv:
        p = 0 if k == 5 else done[2 * k + 1] + 1
        G[p].valu.append(sm_cvt(1, k))
    for i, p in enumerate((0, 2, 2, 4, 4, 6, 6, 9)):
        G[p].mem.append(v_read(0, 0, i))
    G[13].mem.append(aux_read(0))
    seq = []
    for g in G:
        seq += [g.mfma, Slot()] + g.salu + g.mem + g.valu
    return seq

def epilogue(cfg):
    s = []; a = s.append
    s += stamp(cfg, 4)
    X = TMP
    Zr, Fr, Lr = TMP + 16, TMP + 20, TMP + 24
    a(I(f"s_mov_b32 s{sC0}, {hx(f2u(2.0**93))}"))
    a(I(f"s_mov_b32 s{sC1}, {hx(f2u(2.0**-40))}"))
    for n, qb in enumerate((3, 2, 1, 0)):
        O = SB + 32 * (n & 1)
        Pk = PB + 16 * (n & 1)
        for r in range(4): a(I(f"v_accvgpr_read_b32 v{X+4*qb+r}, a{aX(qb)+r}"))
        for x in range(8): a(I(f"v_accvgpr_read_b32 v{O+x}, a{aO(qb,0)+x}"))
        for r in range(4): a(I(f"v_mov_b32_dpp v{Lr+r}, v{X+4*qb+r} row_newbcast:1 row_mask:0xf bank_mask:0xf"))
        for r in range(4): a(I(f"v_add_f32_dpp v{Lr+r}, v{X+4*qb+r}, v{Lr+r} row_newbcast:2 row_mask:0xf bank_mask:0xf"))
        for r in range(4): a(I(f"v_mov_b32_dpp v{Zr+r}, v{X+4*qb+r} row_newbcast:0 row_mask:0xf bank_mask:0xf"))
        for r in range(4): a(I(f"v_rcp_f32 v{Lr+r}, v{Lr+r}"))
        for r in range(4): a(I(f"v_mul_f32 v{Zr+r}, s{sC1}, v{Zr+r}"))
        for r in range(4): a(I(f"v_mul_f32 v{Fr+r}, s{sC0}, v{Lr+r}"))
        for r in range(4): a(I(f"v_mul_f32 v{Zr+r}, v{Zr+r}, v{Lr+r}"))
        for x in range(8, 32): a(I(f"v_accvgpr_read_b32 v{O+x}, a{aO(qb,0)+x}"))
        so = ["0", f"s{s4k}", f"s{s8k}", f"s{s12k}"][qb]
        for rp in range(2):
            for i in range(8):
                o = O + 4 * i + 2 * rp
                a(I(f"v_pk_fma_f32 v[{o}:{o+1}], v[{o}:{o+1}], v[{Fr+2*rp}:{Fr+2*rp+1}], v[{Zr+2*rp}:{Zr+2*rp+1}] neg_lo:[0,0,1] neg_hi:[0,0,1]"))
            for r in (2 * rp, 2 * rp + 1):
                for k in range(4):
                    a(I(f"v_cvt_pk_bf16_f32 v{Pk+4*r+k}, v{O+8*k+r}, v{O+8*k+4+r}"))
            for r in (2 * rp, 2 * rp + 1):
                a(I(f"buffer_store_dwordx4 v[{Pk+4*r}:{Pk+4*r+3}], v{vOst}, {srd(SO)}, {so} offen{off(r*256)}{cfg.st_mod}"))
    mn, mx, lo, hi = Zr, Zr + 1, Zr + 2, Zr + 3
    for x in range(16): a(I(f"v_and_b32 v{X+x}, 0x7fffffff, v{X+x}"))
    a(I(f"v_min_u32 v{mn}, v{X}, v{X+1}"))
    a(I(f"v_max_u32 v{mx}, v{X}, v{X+1}"))
    for x in range(2, 16, 2):
        a(I(f"v_min3_u32 v{mn}, v{mn}, v{X+x}, v{X+x+1}"))
        a(I(f"v_max3_u32 v{mx}, v{mx}, v{X+x}, v{X+x+1}"))
    a(I(f"v_and_b32 v{Fr}, 15, v{vLane}"))
    a(I(f"v_cmp_eq_u32 vcc, 3, v{Fr}"))
    a(I(f"v_mov_b32 v{lo}, {hx(f2u(2.0**50))}"))
    a(I(f"v_mov_b32 v{hi}, {hx(f2u(2.0**119))}"))
    a(I(f"v_mov_b32 v{Fr+1}, {hx(f2u(2.0**126))}"))
    a(I(f"v_cndmask_b32 v{lo}, 0, v{lo}, vcc"))
    a(I(f"v_cndmask_b32 v{hi}, v{Fr+1}, v{hi}, vcc"))
    a(I(f"v_cmp_lt_u32 s[{sBad}:{sBad+1}], v{mn}, v{lo}"))
    a(I(f"v_cmp_gt_u32 vcc, v{mx}, v{hi}"))
    a(I("s_nop 1"))
    a(I(f"s_or_b64 vcc, vcc, s[{sBad}:{sBad+1}]"))
    if cfg.stamp:
        a(I("s_waitcnt vmcnt(0)"))
        a(I(f"s_memrealtime s[{sSt+10}:{sSt+11}]"))
        a(I(f"s_memtime s[{sSt+14}:{sSt+15}]"))
        a(I("s_waitcnt lgkmcnt(0)"))
        a(I("s_mov_b32 s94, 0x100000"))
        a(I("s_mov_b32 s95, 0x20000"))
        a(I(f"s_lshl_b32 s{sT0}, s2, 2"))
        a(I(f"s_add_u32 s{sT0}, s{sT0}, s{sW}"))
        a(I(f"s_lshl_b32 s{sT0}, s{sT0}, 5"))
        for k in range(8): a(I(f"v_mov_b32 v{X+k}, s{sSt+2*k}"))
        a(I(f"v_mov_b32 v{X+8}, 0"))
        a(I(f"buffer_store_dwordx4 v[{X}:{X+3}], v{X+8}, s[92:95], s{sT0} offen"))
        a(I(f"buffer_store_dwordx4 v[{X+4}:{X+7}], v{X+8}, s[92:95], s{sT0} offen offset:16"))
    if cfg.force_slow:
        a(I("s_branch L_slow"))
    else:
        a(I("s_cbranch_vccnz L_slow"))
    a(Label("L_end"))
    a(I("s_endpgm"))
    return with_slots(s)

def slow_path(cfg):
    sQ_, sStep, sKo, sTo, sVt = 52, 53, 54, 55, 61
    vQa, vKa, vTa, vVa, vSa, vOa = 1, 2, 3, 4, 5, 6
    vM, vL, vAl, vT0, vT1 = 7, 8, 9, 10, 12
    Qf, Sc, Zc, Ld, Fr, Sv, Pv = 16, 32, 40, 48, 112, 144, 152
    Ov, Sr, Zr = 160, 192, 196
    pre = []; a = pre.append
    a(Label("L_slow"))
    a(I("s_waitcnt vmcnt(0) lgkmcnt(0)"))
    a(I(f"s_mov_b32 s{sC0}, {hx(f2u(CSCALE))}"))
    a(I(f"s_mov_b32 s{sC2}, 0xffff0000"))
    a(I(f"v_and_b32 v{vT0}, 15, v{vLane}"))
    a(I(f"v_lshrrev_b32 v{vT1}, 4, v{vLane}"))
    a(I(f"s_lshl_b32 s{sT1}, s{sW}, 14"))
    a(I(f"v_lshlrev_b32 v{vQa}, 8, v{vT0}"))
    a(I(f"v_add_u32 v{vQa}, s{sT1}, v{vQa}"))
    a(I(f"v_lshl_add_u32 v{vOa}, v{vT1}, 6, v{vQa}"))
    a(I(f"v_lshl_add_u32 v{vQa}, v{vT1}, 4, v{vQa}"))
    a(I(f"v_lshrrev_b32 v{vKa}, 2, v{vT0}"))
    a(I(f"v_lshlrev_b32 v{vKa}, 3, v{vKa}"))
    a(I(f"v_and_b32 v{vTa}, 3, v{vT0}"))
    a(I(f"v_add_u32 v{vKa}, v{vKa}, v{vTa}"))
    a(I(f"v_lshlrev_b32 v{vKa}, 9, v{vKa}"))
    a(I(f"v_lshl_add_u32 v{vKa}, v{vT1}, 5, v{vKa}"))
    a(I(f"v_lshlrev_b32 v{vTa}, 4, v{vT1}"))
    a(I(f"v_lshlrev_b32 v{vVa}, 12, v{vT1}"))
    a(I(f"v_lshl_add_u32 v{vVa}, v{vT0}, 5, v{vVa}"))
    a(I(f"s_mov_b32 s{sQ_}, 0"))
    qtop = []; a = qtop.append
    a(Label("L_slow_q"))
    for ds in range(4):
        a(I(f"buffer_load_dwordx4 v[{Qf+4*ds}:{Qf+4*ds+3}], v{vQa}, {srd(SQ)}, s{sQ_} offen{off(ds*64)}"))
    a(I(f"v_mov_b32 v{vM}, 0xff800000"))
    a(I(f"v_mov_b32 v{vL}, 0"))
    for x in range(32): a(I(f"v_mov_b32 v{Ov+x}, 0"))
    a(I(f"s_mov_b32 s{sStep}, 0"))
    a(I("s_waitcnt vmcnt(0)"))
    st = []; a = st.append
    a(Label("L_slow_s"))
    a(I(f"s_lshl_b32 s{sKo}, s{sStep}, 14"))
    a(I(f"s_lshr_b32 s{sTo}, s{sStep}, 1"))
    a(I(f"s_lshl_b32 s{sTo}, s{sTo}, 8"))
    a(I(f"s_lshl_b32 s{sVt}, s{sStep}, 6"))
    def unpack(dst, src, j):
        if j & 1: a(I(f"v_and_b32 v{dst}, s{sC2}, v{src+(j>>1)}"))
        else: a(I(f"v_lshlrev_b32 v{dst}, 16, v{src+(j>>1)}"))
    def deq_pair(dst, x0, x1, z0, z1, s0, s1):
        a(I(f"v_cvt_f32_i32 v{x0}, v{x0}")); a(I(f"v_cvt_f32_i32 v{x1}, v{x1}"))
        a(I(f"v_cvt_pk_bf16_f32 v{dst}, v{x0}, v{x1}"))
        unpack(x0, dst, 0); unpack(x1, dst, 1)
        a(I(f"v_sub_f32 v{x0}, v{x0}, v{z0}")); a(I(f"v_sub_f32 v{x1}, v{x1}, v{z1}"))
        a(I(f"v_cvt_pk_bf16_f32 v{dst}, v{x0}, v{x1}"))
        unpack(x0, dst, 0); unpack(x1, dst, 1)
        a(I(f"v_mul_f32 v{x0}, v{x0}, v{s0}")); a(I(f"v_mul_f32 v{x1}, v{x1}, v{s1}"))
        a(I(f"v_cvt_pk_bf16_f32 v{dst}, v{x0}, v{x1}"))
    for ds in range(4):
        a(I(f"buffer_load_dwordx4 v[{Sr}:{Sr+3}], v{vTa}, {srd(SKS)}, s{sTo} offen{off(ds*64)}"))
        a(I(f"buffer_load_dwordx4 v[{Zr}:{Zr+3}], v{vTa}, {srd(SKZ)}, s{sTo} offen{off(ds*64)}"))
        for t in range(2):
            for h in range(2):
                r = Ld + 8 * t + 4 * h
                a(I(f"buffer_load_dwordx4 v[{r}:{r+3}], v{vKa}, {srd(SK)}, s{sKo} offen{off(t*2048 + ds*128 + h*16)}"))
        for j in range(8): unpack(Sc + j, Sr, j)
        for j in range(8): unpack(Zc + j, Zr, j)
        for t in range(2):
            for k in range(4):
                x = Ld + 8 * t + 2 * k
                deq_pair(Fr + 4 * t + k, x, x + 1, Zc + 2 * k, Zc + 2 * k + 1, Sc + 2 * k, Sc + 2 * k + 1)
        for t in range(2):
            c = "0" if ds == 0 else f"v[{Sv+4*t}:{Sv+4*t+3}]"
            a(I(f"v_mfma_f32_16x16x32_bf16 v[{Sv+4*t}:{Sv+4*t+3}], v[{Fr+4*t}:{Fr+4*t+3}], v[{Qf+4*ds}:{Qf+4*ds+3}], {c}"))
    a(I(f"buffer_load_dwordx4 v[{Sr}:{Sr+3}], v{vTa}, {srd(SVS)}, s{sVt} offen"))
    a(I(f"buffer_load_dwordx4 v[{Zr}:{Zr+3}], v{vTa}, {srd(SVZ)}, s{sVt} offen"))
    for j in range(8):
        for h in range(2):
            r = Ld + 8 * j + 4 * h
            a(I(f"buffer_load_dwordx4 v[{r}:{r+3}], v{vVa}, {srd(SV)}, s{sKo} offen{off(j*512 + h*16)}"))
    for x in range(8): a(I(f"v_mul_f32 v{Sv+x}, s{sC0}, v{Sv+x}"))
    a(I(f"v_max3_f32 v{vT0}, v{Sv}, v{Sv+1}, v{Sv+2}"))
    a(I(f"v_max3_f32 v{vT0}, v{vT0}, v{Sv+3}, v{Sv+4}"))
    a(I(f"v_max3_f32 v{vT0}, v{vT0}, v{Sv+5}, v{Sv+6}"))
    a(I(f"v_max3_f32 v{vT0}, v{vT0}, v{Sv+7}, v{vM}"))
    a(I(f"v_mov_b32 v{vT1}, v{vT0}"))
    a(I(f"v_permlane16_swap_b32 v{vT0}, v{vT1}"))
    a(I(f"v_max_f32 v{vT0}, v{vT0}, v{vT1}"))
    a(I(f"v_mov_b32 v{vT1}, v{vT0}"))
    a(I(f"v_permlane32_swap_b32 v{vT0}, v{vT1}"))
    a(I(f"v_max_f32 v{vT0}, v{vT0}, v{vT1}"))
    a(I(f"v_max_f32 v{vT1}, {hx(0xff7fffff)}, v{vT0}"))
    a(I(f"v_sub_f32 v{vAl}, v{vM}, v{vT1}"))
    a(I(f"v_mov_b32 v{vM}, v{vT0}"))
    a(I(f"v_exp_f32 v{vAl}, v{vAl}"))
    for x in range(8): a(I(f"v_sub_f32 v{Sv+x}, v{Sv+x}, v{vT1}"))
    for x in range(8): a(I(f"v_exp_f32 v{Sv+x}, v{Sv+x}"))
    a(I(f"v_mul_f32 v{vL}, v{vL}, v{vAl}"))
    for x in range(8): a(I(f"v_add_f32 v{vL}, v{vL}, v{Sv+x}"))
    for k in range(4): a(I(f"v_cvt_pk_bf16_f32 v{Pv+k}, v{Sv+2*k}, v{Sv+2*k+1}"))
    for x in range(32): a(I(f"v_mul_f32 v{Ov+x}, v{Ov+x}, v{vAl}"))
    for j in range(8): unpack(Sc + j, Sr, j)
    for j in range(8): unpack(Zc + j, Zr, j)
    for i in range(8):
        for k in range(4):
            x0, x1 = Ld + 8 * (2 * k) + i, Ld + 8 * (2 * k + 1) + i
            deq_pair(Fr + 4 * i + k, x0, x1, Zc + 2 * k, Zc + 2 * k + 1, Sc + 2 * k, Sc + 2 * k + 1)
    for i in range(8):
        a(I(f"v_mfma_f32_16x16x32_bf16 v[{Ov+4*i}:{Ov+4*i+3}], v[{Fr+4*i}:{Fr+4*i+3}], v[{Pv}:{Pv+3}], v[{Ov+4*i}:{Ov+4*i+3}]"))
    a(I("s_nop 7"))
    a(I(f"s_add_u32 s{sStep}, s{sStep}, 1"))
    a(I(f"s_cmp_lt_u32 s{sStep}, 64"))
    a(I("s_cbranch_scc1 L_slow_s"))
    fin = []; a = fin.append
    a(I(f"v_mov_b32 v{vT1}, v{vL}"))
    a(I(f"v_permlane16_swap_b32 v{vL}, v{vT1}"))
    a(I(f"v_add_f32 v{vL}, v{vL}, v{vT1}"))
    a(I(f"v_mov_b32 v{vT1}, v{vL}"))
    a(I(f"v_permlane32_swap_b32 v{vL}, v{vT1}"))
    a(I(f"v_add_f32 v{vL}, v{vL}, v{vT1}"))
    a(I(f"v_rcp_f32 v{vL}, v{vL}"))
    for x in range(32): a(I(f"v_mul_f32 v{Ov+x}, v{Ov+x}, v{vL}"))
    for r in range(4):
        for k in range(4):
            a(I(f"v_cvt_pk_bf16_f32 v{Fr+4*r+k}, v{Ov+8*k+r}, v{Ov+8*k+4+r}"))
        a(I(f"buffer_store_dwordx4 v[{Fr+4*r}:{Fr+4*r+3}], v{vOa}, {srd(SO)}, s{sQ_} offen{off(r*16)}"))
    a(I("s_waitcnt vmcnt(0)"))
    a(I(f"s_add_u32 s{sQ_}, s{sQ_}, 0x1000"))
    a(I(f"s_cmp_lt_u32 s{sQ_}, 0x4000"))
    a(I("s_cbranch_scc1 L_slow_q"))
    a(I("s_endpgm"))
    pre, qtop, st, fin = map(with_slots, (pre, qtop, st, fin))
    insert_waits(pre + qtop + st + st + fin + qtop + st + fin)
    pre = pad_hazards(pre); qtop = pad_hazards(qtop, pre[-30:])
    st = pad_hazards(st, qtop[-30:]); fin = pad_hazards(fin, st[-30:])
    bad = check_hazards(pre + qtop + st + st + fin + qtop + st)
    assert not bad, bad[:4]
    return pre + qtop + st + fin

def build(cfg):
    pro = prologue(cfg)
    b0, G0 = body(cfg, 0, "first", branch=None)
    b0 += [I("s_branch L_odd")]
    ev, Ge = body(cfg, 0, "mid")
    od, Go = body(cfg, 1, "mid", branch=I("s_cbranch_scc0 L_even"))
    k = max(i for i, x in enumerate(od) if x.kind == "branch")
    od_post = od[k + 1:]; od = od[:k + 1]
    def clone(seq): return [I(x.text, tags=x.tags, needs=x.needs) for x in seq]
    ev = [Label("L_even")] + clone(od_post) + ev
    od = [Label("L_odd")] + od
    tl = clone(od_post) + tail(cfg)
    ep = epilogue(cfg)
    trace = pro + b0 + od + ev + od + ev + od + tl + ep
    insert_waits(trace)
    pro = pad_hazards(pro)
    b0 = pad_hazards(b0, pro[-40:])
    tl = pad_hazards(tl, od[-40:])
    ep = pad_hazards(ep, tl[-40:])
    trace = pro + b0 + od + ev + od + ev + od + tl + ep
    bad = check_hazards(trace)
    assert not bad, bad[:6]
    for nm, seq in (("even", ev), ("odd", od)):
        dbl = 0
        real = [x for x in seq if states(x) > 0]
        for i in range(len(real) - 2):
            if real[i].kind == "mfma" and real[i+1].kind in ("slot", "salu") and real[i+2].kind in ("slot", "salu"): dbl += 1
        sys.stderr.write(f"{nm}: instrs {len(real)} double-shadow {dbl}\n")
    sys.stderr.write(f"slots even {gap_report(Ge)} odd {gap_report(Go)} first {gap_report(G0)[0]}\n")
    slow = slow_path(cfg)
    text = render(pro) + render(b0) + ".p2align 6\n" + render(ev) + render(od) + render(tl) + render(ep) + render(slow)
    return text

HEADER = """; Fused KIVI-style dequant + attention, B=1 H=32 S=2048 D=128 (generated by a script of my own, work/gen.py).
;  with an unsafe row recomputes its rows with the true online maximum (L_slow).
; @launch grid=(256,1,1) block=(256,1,1) lds=%d
.amdgcn_target "amdgcn-amd-amdhsa--gfx950"
.text
.globl %s
.p2align 8
.type %s,@function
%s:
"""
FOOTER = """.section .rodata,"a"
.p2align 6
.amdhsa_kernel %s
  .amdhsa_next_free_vgpr 512
  .amdhsa_next_free_sgpr 96
  .amdhsa_accum_offset 256
  .amdhsa_group_segment_fixed_size 0
  .amdhsa_kernarg_size 80
  .amdhsa_user_sgpr_count 2
  .amdhsa_user_sgpr_kernarg_segment_ptr 1
  .amdhsa_system_sgpr_workgroup_id_x 1
  .amdhsa_float_denorm_mode_32 3
.end_amdhsa_kernel
"""

def main():
    cfg = Cfg()
    out = sys.argv[1]
    for kv in sys.argv[2:]:
        k, _, v = kv.partition("=")
        cur = getattr(cfg, k)
        if isinstance(cur, bool): v = v in ("1", "true", "True")
        elif isinstance(cur, int): v = int(v)
        elif v: v = " " + v.replace("+", " ")
        setattr(cfg, k, v)
    text = HEADER % (LDS_BYTES, NAME, NAME, NAME) + build(cfg) + FOOTER % NAME
    open(out, "w").write(text)

if __name__ == "__main__":
    main()
```
